```python
import torch

def _softmax(x, axis=-1):
    return torch.softmax(x, dim=axis)
def _gelu(x):
    return torch.nn.functional.gelu(x, approximate="tanh")
def _silu(x):
    return torch.nn.functional.silu(x)
def _sigmoid(x):
    return torch.sigmoid(x)
def _layernorm(x, axis=-1, eps=1e-5):
    m = x.mean(dim=axis, keepdim=True)
    v = x.var(dim=axis, keepdim=True, unbiased=False)
    return (x - m) / torch.sqrt(v + eps)
def _scatter_add(tgt, idx, src, axis=0):
    return tgt.clone().index_add_(axis, idx, src)
def _segment_sum(src, seg, n):
    out = torch.zeros((n,) + src.shape[1:], dtype=src.dtype)
    return out.index_add_(0, seg, src)
def _pad(x, pw):
    flat = tuple(v for pair in reversed(pw) for v in pair)
    return torch.nn.functional.pad(x, flat)

kernel_name = 'parallel_sum__sliding_block_cached__geglu_ffn__decode'

def setup_inputs():

    _w = (lambda a: (lambda t: t.to(torch.bfloat16) if t.is_floating_point() else t)(torch.as_tensor(a)))
    def _A_setup():
        B, Sq, D = 1, 1, 512
        Hq, Hkv, Sk, Dh = 32, 8, 65536, 128
        assert Hq % Hkv == 0, (Hq, Hkv)
        return {
            "x": _w((lambda *s: torch.randn(*s, dtype=torch.bfloat16) * 0.05)(B, Sq, D)),
            "k_cache": _w((lambda *s: torch.randn(*s, dtype=torch.bfloat16) * 3.2)(B, Hkv, Sk, Dh)),
            "v_cache": _w((lambda *s: torch.randn(*s, dtype=torch.bfloat16) * 1.6)(B, Hkv, Sk, Dh)),
            "wq": _w((lambda *s: torch.randn(*s, dtype=torch.bfloat16) * 3.2)(D, Hq * Dh) * (D ** -0.5)),
            "wo": _w((lambda *s: torch.randn(*s, dtype=torch.bfloat16) * 1.6)(Hq * Dh, D) * ((Hq * Dh) ** -0.5)),
        }
    _A_in = _A_setup()

    def _B_setup():
        B, S, D, F = 1, 1, 512, 1792
        return {
            "x": _w((lambda *s: torch.randn(*s, dtype=torch.bfloat16) * 0.05)(B, S, D)),
            "w_gate": _w((lambda *s: torch.randn(*s, dtype=torch.bfloat16) * 0.05)(D, F)),
            "w_up": _w((lambda *s: torch.randn(*s, dtype=torch.bfloat16) * 0.05)(D, F)),
            "w_down": _w((lambda *s: torch.randn(*s, dtype=torch.bfloat16) * 0.05)(F, D)),
        }
    _B_in = _B_setup()

    return {
        "A_x": _A_in["x"],
        "A_k_cache": _A_in["k_cache"],
        "A_v_cache": _A_in["v_cache"],
        "A_wq": _A_in["wq"],
        "A_wo": _A_in["wo"],
        "B_x": _B_in["x"],
        "B_w_gate": _B_in["w_gate"],
        "B_w_up": _B_in["w_up"],
        "B_w_down": _B_in["w_down"],
    }

def reference(A_x, A_k_cache, A_v_cache, A_wq, A_wo, B_x, B_w_gate, B_w_up, B_w_down):
    def _A_ref(x, k_cache, v_cache, wq, wo):
        B, Sq, D = x.shape
        Hq, Dh = 32, 128
        Hkv, Sk = k_cache.shape[1], k_cache.shape[2]
        W = min(4096, max(256, Sk // 4))
        rep = Hq // Hkv
        q = (lambda x, *d: x.permute(*d))((x @ wq).reshape(B, Sq, Hq, Dh), 0, 2, 1, 3)
        k = (lambda x, n, axis: torch.repeat_interleave(x, n, dim=axis))(k_cache[:, :, Sk - W:, :], rep, axis=1)
        v = (lambda x, n, axis: torch.repeat_interleave(x, n, dim=axis))(v_cache[:, :, Sk - W:, :], rep, axis=1)
        scores = torch.einsum("bhqd,bhkd->bhqk", q, k) * (Dh ** -0.5)
        p = _softmax(scores, axis=-1)
        o = torch.einsum("bhqk,bhkd->bhqd", p, v)
        return (lambda x, *d: x.permute(*d))(o, 0, 2, 1, 3).reshape(B, Sq, Hq * Dh) @ wo

    def _B_ref(x, w_gate, w_up, w_down):
        return (_gelu(x @ w_gate) * (x @ w_up)) @ w_down

    x = A_x
    xn = _layernorm(x, axis=-1)
    return x + _A_ref(xn, A_k_cache, A_v_cache, A_wq, A_wo) + _B_ref(xn, B_w_gate, B_w_up, B_w_down)
```

```python
import re

TRANS = ("v_exp_f32", "v_log_f32", "v_rcp_f32", "v_rsq_f32", "v_sqrt_f32", "v_sin_f32", "v_cos_f32")

def regs_of(tok):
    tok = tok.strip()
    tok = re.sub(r"^-", "", tok)
    m = re.match(r"^abs\((.*)\)$", tok)
    if m: tok = m.group(1)
    tok = tok.strip("|")
    m = re.match(r"^([vsa])(\d+)$", tok)
    if m: return {(m.group(1), int(m.group(2)))}
    m = re.match(r"^([vsa])\[(\d+):(\d+)\]$", tok)
    if m: return {(m.group(1), i) for i in range(int(m.group(2)), int(m.group(3)) + 1)}
    if tok in ("vcc", "vcc_lo", "vcc_hi"): return {("s", "vcc")}
    if tok in ("exec", "exec_lo", "exec_hi"): return {("s", "exec")}
    if tok == "m0": return {("s", "m0")}
    return set()

class Ins:
    def __init__(self, text):
        self.text = text
        t = text.split(";")[0].strip()
        self.label = t.endswith(":")
        self.mn = t.split()[0] if t else ""
        rest = t[len(self.mn):].strip()
        ops = [o.strip() for o in rest.split(",")] if rest else []
        fixed = []
        depth = 0
        for o in ops:
            if depth: fixed[-1] += "," + o
            else: fixed.append(o)
            depth += o.count("[") - o.count("]")
        ops = fixed
        self.mods = ""
        if ops:
            parts = ops[-1].split(None, 1)
            ops[-1] = parts[0]
            self.mods = parts[1] if len(parts) > 1 else ""
        self.ops = ops
        mn = self.mn
        self.is_mfma = mn.startswith("v_mfma")
        self.is_valu = mn.startswith("v_") and not self.is_mfma
        self.is_vmem = mn.startswith(("global_", "buffer_", "flat_"))
        self.is_ds = mn.startswith("ds_")
        self.is_dpp = "_dpp" in mn
        self.is_sdwa = "_sdwa" in mn
        self.is_perml = mn.startswith("v_permlane")
        self.is_trans = mn.startswith(TRANS)
        self.is_rdlane = mn.startswith(("v_readlane", "v_readfirstlane"))
        R = [regs_of(o) for o in ops]
        w = set(); r = set()
        self.srcC = set(); self.srcAB = set(); self.store_data = set()
        if self.label or not mn or mn.startswith("."):
            pass
        elif self.is_mfma:
            w = R[0]; self.srcAB = R[1] | R[2]; self.srcC = R[3]; r = self.srcAB | self.srcC
        elif self.is_perml:
            w = R[0] | R[1]; r = R[0] | R[1]
        elif self.is_valu:
            w = set(R[0]); first = 1
            if mn.startswith(("v_add_co", "v_sub_co", "v_addc_co", "v_subb_co", "v_subrev_co", "v_div_scale", "v_mad_u64")):
                w |= R[1]; first = 2
            for x in R[first:]: r |= x
            if mn.startswith(("v_fmac", "v_dot2c", "v_writelane", "v_pk_fmac")) or self.is_dpp or self.is_sdwa: r |= R[0]
            if mn.startswith("v_cndmask") and len(ops) == 3: r |= {("s", "vcc")}
            if mn.startswith("v_cmpx"): w |= {("s", "exec")}
        elif self.is_vmem:
            if "_load" in mn and "lds" not in mn and " lds" not in (" " + self.mods):
                w = R[0]
                for x in R[1:]: r |= x
            else:
                for x in R: r |= x
                if "store" in mn and ("x4" in mn or "x3" in mn):
                    self.store_data = R[1] if mn.startswith("global_") else R[0]
        elif self.is_ds:
            if "read" in mn or "bpermute" in mn or "swizzle" in mn or "_rtn" in mn:
                w = R[0]
                for x in R[1:]: r |= x
            else:
                for x in R: r |= x
        elif mn.startswith("s_"):
            if mn.startswith(("s_cmp", "s_cbranch", "s_branch", "s_waitcnt", "s_nop", "s_barrier", "s_endpgm", "s_sleep", "s_setprio", "s_bitcmp")):
                for x in R: r |= x
            else:
                if R: w = set(R[0])
                for x in R[1:]: r |= x
                if "saveexec" in mn: w |= {("s", "exec")}
        self.w = w; self.r = r
        self.slots = 1
        if mn == "s_nop": self.slots = int(ops[0], 0) + 1
        if self.label or not mn or mn.startswith("."): self.slots = 0
        self.passes = 0
        if self.is_mfma:
            self.passes = {"v_mfma_f32_16x16x32_bf16": 4, "v_mfma_f32_32x32x16_bf16": 8, "v_mfma_f32_16x16x16_bf16": 4,
                           "v_mfma_f32_4x4x4_16b_bf16": 2}[mn]

def isv(s): return {x for x in s if x[0] in ("v", "a")}
def iss(s): return {x for x in s if x[0] == "s"}

def need(p, c):
    n = 0
    if p.is_valu:
        vw = isv(p.w); sw = iss(p.w)
        if vw & c.r:
            if c.is_dpp: n = max(n, 2)
            if c.is_perml: n = max(n, 2)
            if c.is_mfma: n = max(n, 2)
            if c.is_rdlane: n = max(n, 1)
            if p.is_trans and (c.is_valu and not c.is_trans): n = max(n, 1)
            if p.is_trans and not c.is_valu: n = max(n, 1)
            if p.is_sdwa or "op_sel" in p.mods: n = max(n, 1)
        if p.is_sdwa and vw & c.w: n = max(n, 1)
        if sw & c.r:
            if c.is_valu: n = max(n, 4 if c.mn.startswith(("v_readlane", "v_writelane")) else 2)
            if c.is_vmem: n = max(n, 5)
        if ("s", "exec") in sw:
            if c.is_dpp: n = max(n, 5)
            if c.is_mfma or c.is_perml or c.is_rdlane or c.mn.startswith("v_writelane"): n = max(n, 4)
    if p.is_mfma:
        P = p.passes
        t_rw = {2: 5, 4: 8, 8: 12, 16: 20}[P]
        if c.is_mfma:
            if p.w & c.srcAB: n = max(n, t_rw)
            if p.w & c.srcC:
                if p.w == c.srcC and c.passes == P: n = max(n, 2 if P == 2 else 0)
                else: n = max(n, {2: 4, 4: 6, 8: 10, 16: 18}[P])
            elif p.w & c.w: n = max(n, t_rw)
        else:
            if p.w & (c.r | c.w): n = max(n, t_rw)
            if c.is_valu and (p.srcC & c.w): n = max(n, {2: 1, 4: 3, 8: 7, 16: 15}[P])
    if p.store_data and (p.store_data & c.w): n = max(n, 2)
    if p.mn.startswith("s_") and ("s", "m0") in p.w and (c.is_vmem and ("lds" in c.mn or "lds" in c.mods)): n = max(n, 1)
    return n

class Asm:
    def __init__(self):
        self.ins = []
        self.vm = []
        self.nops = 0
    def __call__(self, text):
        for line in text.strip().split("\n"):
            line = line.strip()
            if not line: continue
            c = Ins(line)
            if c.slots or c.label:
                req = 0; dist = 0
                for p in reversed(self.ins):
                    if dist >= 20: break
                    if p.slots == 0: continue
                    k = need(p, c) - dist
                    req = max(req, k)
                    dist += p.slots
                if req > 0:
                    self.nops += req
                    while req > 0:
                        k = min(req, 16)
                        self.ins.append(Ins(f"s_nop {k-1}"))
                        req -= k
            self.ins.append(c)
    def vmem(self, name, text):
        self(text); self.vm.append(name)
    def wait_vm(self, name, extra=""):
        idx = max(i for i, n in enumerate(self.vm) if n == name)
        n = len(self.vm) - 1 - idx
        assert n <= 63
        self(f"s_waitcnt vmcnt({n}){extra}")
    def text(self):
        return "\n".join(("" if i.label else "  ") + i.text for i in self.ins)
```

```python
import sys
from asmlib import Asm
KN = "parallel_sum__sliding_block_cached__geglu_ffn__decode_kernel"
HEADER = open("parallel_sum__sliding_block_cached__geglu_ffn__decode.s.ref").read().split("; Override launch geometry")[0]

Q_WS, G_WS, M_WS, L_WS, O_WS, F_WS, STAMP = 0x1000, 0x20000, 0x30000, 0x38000, 0x40000, 0xC0000, 0x100000
QRED, QB, MX, ORED, FRED = 0, 4096, 5120, 5632, 14336
OSTR = 2112
LDS_BYTES = 17408
LOG2E = 0x3fb8aa3b

def fbits(x):
    import struct
    return struct.unpack("<I", struct.pack("<f", x))[0]

def gen(pol=" nt", D=8, p1_after=4, stamps=False, kextra=0):
    A = Asm()
    DPPF = "row_mask:0xf bank_mask:0xf"
    nst = [0]
    def stamp(name):
        if stamps:
            i = nst[0]; nst[0] += 1
            assert i < 16
            A(f"s_memrealtime s[{60+2*i}:{61+2*i}]")
    def vr(a, n=4): return f"v[{a}:{a+n-1}]"
    WQ, GU, KR, VR, DN, WO, P1, P2, GG = 40, 56, 72, 104, 136, 144, 160, 168, 176
    AX, ACQ, ACG, QBR, ST, ACO = 180, 196, 200, 204, 220, 228
    T = ["s32", "s33", "s34", "s35"]

    stamp("start")
    A("s_cmp_ge_u32 s2, 256")
    A("s_cbranch_scc1 L_end")
    A("s_load_dwordx16 s[4:19], s[0:1], 0")
    A("s_load_dwordx8 s[20:27], s[0:1], 64")
    A("v_and_b32 v1, 63, v0")
    A("v_lshrrev_b32 v15, 6, v0")
    A("v_and_b32 v2, 15, v0")
    A("v_readfirstlane_b32 s3, v15")
    A("v_bfe_u32 v3, v0, 4, 2")
    A("s_and_b32 s28, s2, 7")
    A("s_lshr_b32 s29, s2, 3")
    A("s_lshr_b32 s36, s2, 6")
    A("s_and_b32 s37, s29, 7")
    A("v_lshlrev_b32 v236, 4, v1")
    A("v_lshrrev_b32 v22, 3, v0")
    A("v_and_b32 v23, 7, v0")
    A("v_lshlrev_b32 v23, 4, v23")
    A("s_lshl_b32 s38, s36, 8")
    A("v_lshl_add_u32 v237, v22, 3, s38")
    A("v_lshl_add_u32 v8, v22, 15, v23")
    A("s_lshl_b32 s38, s36, 20"); A("s_lshl_b32 s39, s28, 10"); A("s_add_u32 s38, s38, s39")
    A("s_lshl_b32 s39, s37, 7"); A("s_add_u32 s38, s38, s39")
    A("v_add_u32 v24, 0x2000, v8"); A("v_add_u32 v25, 0x4000, v8"); A("v_add_u32 v26, 0x6000, v8")
    A("s_min_u32 s41, s37, 6"); A("s_mul_i32 s42, s28, 7"); A("s_add_u32 s41, s41, s42")
    A(f"v_mul_u32_u24 v9, {4*3584}, v22"); A("v_add_u32 v9, v9, v23"); A("v_add_u32 v10, 7168, v9")
    A("s_lshr_b32 s43, s41, 1")
    A(f"s_mul_i32 s44, s36, {128*3584}"); A("s_lshl_b32 s45, s43, 7"); A("s_add_u32 s44, s44, s45")
    A("s_waitcnt lgkmcnt(0)")
    A("s_load_dword s30, s[26:27], 0")
    A.vmem("xf", "global_load_dwordx4 v[16:19], v236, s[4:5]")
    A.vmem("xr", "global_load_dwordx2 v[20:21], v237, s[4:5]")
    A("s_add_u32 s10, s10, s38"); A("s_addc_u32 s11, s11, 0")
    for i, o in enumerate(["v8", "v24", "v25", "v26"]):
        A.vmem(f"wq{i}", f"global_load_dwordx4 {vr(WQ+4*i)}, {o}, s[10:11]{pol}")
    A("s_bitcmp0_b32 s41, 0")
    A("s_cselect_b32 s16, s16, s18"); A("s_cselect_b32 s17, s17, s19")
    A("s_add_u32 s16, s16, s44"); A("s_addc_u32 s17, s17, 0")
    A("s_lshl_b32 s38, s28, 24"); A("s_lshl_b32 s39, s29, 15"); A("s_add_u32 s38, s38, s39"); A(f"s_add_u32 s38, s38, {(65536-4096)*256 + 4096}")
    A("s_add_u32 s6, s6, s38"); A("s_addc_u32 s7, s7, 0")
    A("s_add_u32 s8, s8, s38"); A("s_addc_u32 s9, s9, 0")
    A("s_barrier")
    for i in range(4):
        A.vmem(f"gu{i}", f"global_load_dwordx4 {vr(GU+4*i)}, {'v9' if i < 2 else 'v10'}, s[16:17] offset:{(i%2)*3584}{pol}")
    A("v_and_b32 v22, 3, v0"); A("v_lshlrev_b32 v22, 10, v22")
    A("v_bfe_u32 v23, v0, 2, 2"); A("v_lshl_add_u32 v22, v23, 8, v22")
    A("v_lshl_add_u32 v22, v3, 4, v22")
    A("v_lshl_add_u32 v11, v15, 13, v22")
    A("v_lshl_add_u32 v12, v15, 13, v236")
    seq = []
    for t in range(2):
        for kk in range(4):
            seq.append((f"k{4*t+kk}", f"global_load_dwordx4 {vr(KR+16*t+4*kk)}, v11, s[6:7] offset:{4096*t-4096+64*kk}{pol}"))
    vl = [(f"v{i}", f"global_load_dwordx4 {vr(VR+4*i)}, v12, s[8:9] offset:{1024*i-4096}{pol}") for i in range(8)]
    def qpoll(name, R):
        return [(name+"a", f"global_load_dwordx4 {vr(R)}, v238, s[26:27] offset:-4096 sc1"),
                (name+"b", f"global_load_dwordx4 {vr(R+4)}, v238, s[26:27] sc1")]
    seq += vl[:p1_after] + qpoll("p1", P1) + vl[p1_after:] + qpoll("p2", P2)
    seq.append(("gg", f"global_load_dwordx4 {vr(GG)}, v239, s[26:27] sc1"))
    seq += [(f"dn{i}", f"global_load_dwordx4 {vr(DN+4*i)}, v14, s[20:21] offset:{1024*i}{pol}") for i in range(2)]
    seq += [(f"wo{i}", f"global_load_dwordx4 {vr(WO+4*i)}, v13, s[12:13] offset:{1024*i}{pol}") for i in range(4)]
    pos = [0]
    def issue(k=1):
        for _ in range(k):
            if pos[0] < len(seq):
                A.vmem(*seq[pos[0]]); pos[0] += 1
    issue(max(0, D - 8))
    A("v_lshlrev_b32 v22, 4, v2")
    A("v_lshrrev_b32 v23, 4, v0")
    A("v_lshl_add_u32 v13, v23, 12, v22")
    A("v_lshl_add_u32 v14, v23, 11, v22")
    A("s_lshr_b32 s46, s29, 2")
    A("s_and_b32 s47, s29, 3")
    A("s_lshl_b32 s38, s28, 19"); A("s_lshl_b32 s39, s46, 16"); A("s_add_u32 s38, s38, s39"); A("s_lshl_b32 s39, s47, 8"); A("s_add_u32 s38, s38, s39")
    A("s_add_u32 s12, s12, s38"); A("s_addc_u32 s13, s13, 0")
    A("s_min_u32 s48, s46, 6"); A("s_add_u32 s48, s48, s42")
    A("s_lshl_b32 s38, s48, 15"); A("s_add_u32 s38, s38, s39")
    A("s_add_u32 s20, s20, s38"); A("s_addc_u32 s21, s21, 0")
    A("s_lshl_b32 s38, s28, 13"); A(f"s_add_u32 s38, s38, {Q_WS+4096}")
    A("v_and_b32 v22, 31, v0"); A("v_lshl_add_u32 v22, v22, 4, s38")
    A("v_lshl_add_u32 v22, v15, 9, v22")
    A("v_lshrrev_b32 v24, 5, v1"); A("v_lshl_add_u32 v238, v24, 11, v22")
    A("s_lshl_b32 s38, s48, 7"); A(f"s_add_u32 s38, s38, {G_WS}")
    A("v_and_b32 v22, 7, v0"); A("v_mul_u32_u24 v22, 7168, v22")
    A("v_lshrrev_b32 v25, 5, v0"); A("v_lshl_add_u32 v22, v25, 4, v22"); A("v_add_u32 v239, s38, v22")
    A("v_and_b32 v22, 1, v0"); A("v_lshlrev_b32 v22, 4, v22"); A("v_mov_b32 v25, 0xffff"); A("v_lshlrev_b32 v22, v22, v25")
    A("v_bfe_u32 v25, v0, 1, 2")
    for d in range(4):
        A(f"v_cmp_eq_u32 vcc, {d}, v25"); A(f"v_cndmask_b32 v{4+d}, 0, v22, vcc")
    A("v_lshlrev_b32 v22, 5, v2"); A("v_lshl_add_u32 v22, v15, 9, v22"); A("v_and_b32 v25, 16, v0"); A("v_add_u32 v22, v22, v25")
    A("v_lshl_add_u32 v240, v24, 3, v22")
    def wave_sum(v, s):
        for r in (8, 4, 2, 1):
            A(f"v_add_f32_dpp {v}, {v}, {v} row_ror:{r} {DPPF}")
        A(f"v_add_f32_dpp {v}, {v}, {v} row_bcast:15 row_mask:0xa bank_mask:0xf")
        A(f"v_add_f32_dpp {v}, {v}, {v} row_bcast:31 row_mask:0xc bank_mask:0xf")
        A(f"v_readlane_b32 {s}, {v}, 63")
    A.wait_vm("xf")
    stamp("x")
    for i in range(4):
        A(f"v_lshlrev_b32 v{22+2*i}, 16, v{16+i}"); A(f"v_and_b32 v{23+2*i}, 0xffff0000, v{16+i}")
    A("v_pk_add_f32 v[30:31], v[22:23], v[24:25]"); A("v_pk_add_f32 v[32:33], v[26:27], v[28:29]")
    A("v_pk_add_f32 v[30:31], v[30:31], v[32:33]"); A("v_add_f32 v30, v30, v31")
    wave_sum("v30", "s38")
    A(f"v_mov_b32 v31, {fbits(1.0/512):#x}")
    A("v_mul_f32 v32, s38, v31")
    for i in range(8): A(f"v_sub_f32 v{22+i}, v{22+i}, v32")
    A("v_mul_f32 v30, v22, v22"); A("v_mul_f32 v33, v23, v23")
    for i in range(2, 8, 2):
        A(f"v_fmac_f32 v30, v{22+i}, v{22+i}"); A(f"v_fmac_f32 v33, v{23+i}, v{23+i}")
    A("v_add_f32 v30, v30, v33")
    wave_sum("v30", "s39")
    A("v_cvt_pk_bf16_f32 v32, 0, v32")
    A("v_mul_f32 v33, s39, v31")
    A("v_cvt_pk_bf16_f32 v33, 0, v33")
    A(f"v_add_f32 v33, {fbits(1e-5):#x}, v33")
    A("v_cvt_pk_bf16_f32 v33, 0, v33")
    A("v_sqrt_f32 v33, v33")
    A("v_cvt_pk_bf16_f32 v33, 0, v33")
    A("v_rcp_f32 v33, v33")
    A.wait_vm("xr")
    for i in range(2):
        A(f"v_lshlrev_b32 v{22+2*i}, 16, v{20+i}"); A(f"v_and_b32 v{23+2*i}, 0xffff0000, v{20+i}")
    for i in range(4): A(f"v_sub_f32 v{22+i}, v{22+i}, v32")
    for i in range(4): A(f"v_cvt_pk_bf16_f32 v{22+i}, 0, v{22+i}")
    for i in range(4): A(f"v_mul_f32 v{22+i}, v{22+i}, v33")
    for i in range(4): A(f"v_cvt_pk_bf16_f32 v{22+i}, v{22+i}, v{22+i}")
    for i in range(4):
        for d in range(4): A(f"v_and_b32 v{AX+4*i+d}, v{22+i}, v{4+d}")
    stamp("ln")
    A("s_waitcnt lgkmcnt(0)")
    A("s_add_u32 s30, s30, 0x9E3779B1")
    A("s_and_b32 s32, s30, 0xff"); A("s_bfe_u32 s33, s30, 0x80008"); A("s_bfe_u32 s34, s30, 0x80010"); A("s_lshr_b32 s35, s30, 24")
    A("v_mov_b32 v241, 0xffffff00")
    A("s_mov_b32 s40, 0x100000")
    def tagit(R):
        for d in range(4): A(f"v_and_or_b32 v{R+d}, v{R+d}, v241, {T[d]}")
    def check(regs, acc):
        for k, R in enumerate(regs):
            for d in range(4):
                if k == 0 and d == 0: A(f"v_xor_b32 {acc}, {T[0]}, v{R}")
                else: A(f"v_bitop3_b32 {acc}, {acc}, v{R+d}, {T[d]} bitop3:0xf6")
        A(f"v_and_b32 {acc}, 0xff, {acc}")
        A(f"v_cmp_ne_u32 vcc, 0, {acc}")
    def tile(name, W, ACC, mat, who, pubfn, lab):
        for i in range(4):
            A.wait_vm(f"{name}{i}")
            A(f"v_mfma_f32_16x16x32_bf16 {vr(ACC)}, {vr(AX+4*i)}, {vr(W+4*i)}, {'0' if i == 0 else vr(ACC)}")
            issue()
        A(f"v_permlane32_swap_b32 v{ACC}, v{ACC+2}"); A(f"v_permlane32_swap_b32 v{ACC+1}, v{ACC+3}")
        A(f"v_add_f32_dpp v22, v{ACC+2}, v{ACC} row_ror:8 {DPPF}"); A(f"v_add_f32_dpp v23, v{ACC+3}, v{ACC+1} row_ror:8 {DPPF}")
        A(f"ds_write_b64 v240, v[22:23] offset:{QRED + mat*2048}")
        A("s_waitcnt lgkmcnt(0)")
        A("s_barrier")
        A(f"s_cmp_lg_u32 s3, {who}")
        A(f"s_cbranch_scc1 {lab}")
        pubfn()
        for k in range(4): A(f"ds_read_b128 {vr(22+4*k+2)}, v236 offset:{QRED + mat*2048 + 512*k}")
        A("s_mov_b64 exec, 0xffff")
        A("s_waitcnt lgkmcnt(2)")
        A("v_pk_add_f32 v[24:25], v[24:25], v[28:29]"); A("v_pk_add_f32 v[26:27], v[26:27], v[30:31]")
        A("s_waitcnt lgkmcnt(0)")
        A("v_pk_add_f32 v[32:33], v[32:33], v[36:37]"); A("v_pk_add_f32 v[34:35], v[34:35], v[38:39]")
        A("v_pk_add_f32 v[24:25], v[24:25], v[32:33]"); A("v_pk_add_f32 v[26:27], v[26:27], v[34:35]")
        tagit(24)
        A("global_store_dwordx4 v22, v[24:27], s[26:27] sc1")
        A("s_mov_b64 exec, -1")
        A("s_nop 1")
        A(f"{lab}:")
    def pubq():
        A("s_lshl_b32 s38, s28, 2"); A("s_add_u32 s38, s38, s36"); A("s_lshl_b32 s38, s38, 11"); A("s_lshl_b32 s39, s37, 8")
        A("s_add_u32 s38, s38, s39"); A(f"s_add_u32 s38, s38, {Q_WS}")
        A("v_add_u32 v22, s38, v236")
    def pubg():
        A("s_cmp_eq_u32 s37, 7"); A("s_cbranch_scc1 L_gdone")
        A("s_and_b32 s38, s41, 1"); A("s_lshl_b32 s38, s38, 2"); A("s_add_u32 s38, s38, s36"); A("s_mul_i32 s38, s38, 7168")
        A("s_lshl_b32 s39, s43, 8"); A("s_add_u32 s38, s38, s39"); A(f"s_add_u32 s38, s38, {G_WS}")
        A("v_add_u32 v22, s38, v236")
    tile("wq", WQ, ACQ, 0, 0, pubq, "L_qdone")
    stamp("qpub")
    tile("gu", GU, ACG, 1, 1, pubg, "L_gdone")
    stamp("gpub")
    A("v_bfe_u32 v22, v0, 3, 1"); A("v_bfe_u32 v23, v0, 2, 1"); A("v_lshl_or_b32 v22, v23, 1, v22")
    A("v_lshlrev_b32 v23, 4, v3"); A("v_lshl_add_u32 v242, v22, 8, v23")
    A("v_lshrrev_b32 v23, 4, v0"); A("v_lshlrev_b32 v243, 6, v22"); A("v_lshl_add_u32 v244, v23, 2, v243")
    A("v_and_b32 v23, 31, v0"); A("v_lshlrev_b32 v23, 3, v23"); A("v_lshl_add_u32 v23, v15, 8, v23"); A("v_lshrrev_b32 v24, 5, v1"); A("v_lshl_add_u32 v245, v24, 2, v23")
    A("s_lshl_b32 s38, s28, 11"); A("s_lshl_b32 s39, s29, 4"); A("s_add_u32 s49, s38, s39"); A(f"s_add_u32 s38, s49, {M_WS}")
    A("v_lshl_add_u32 v246, v22, 9, s38")
    A(f"v_mul_u32_u24 v25, {OSTR}, v15")
    A("v_lshl_add_u32 v23, v22, 4, v25"); A("v_lshl_add_u32 v247, v3, 2, v23")
    A("v_lshl_add_u32 v23, v24, 9, v25"); A("v_lshl_add_u32 v23, v2, 5, v23"); A("v_and_b32 v26, 16, v0"); A("v_add_u32 v248, v23, v26")
    A("v_cmp_gt_u32 vcc, 32, v1")
    A("v_lshl_add_u32 v23, v15, 9, v236"); A("v_lshlrev_b32 v26, 4, v15"); A("v_add_u32 v26, 2048, v26")
    A("v_cndmask_b32 v249, v26, v23, vcc")
    A("s_lshl_b32 s38, s28, 5"); A("s_add_u32 s38, s38, s29"); A("s_lshl_b32 s38, s38, 11"); A(f"s_add_u32 s38, s38, {O_WS}")
    A("v_add_u32 v23, s38, v23")
    A(f"s_add_u32 s38, s49, {L_WS}"); A("v_lshl_add_u32 v26, v15, 9, s38")
    A("v_cndmask_b32 v250, v26, v23, vcc")
    A("s_lshl_b32 s38, s28, 2"); A("s_add_u32 s38, s38, s36"); A("s_lshl_b32 s38, s38, 9"); A(f"s_add_u32 s38, s38, {M_WS}")
    A("v_lshl_add_u32 v251, v2, 4, s38")
    A(f"v_add_u32 v254, {L_WS-M_WS}, v251")
    A("s_lshl_b32 s38, s28, 16"); A("s_lshl_b32 s39, s46, 8"); A("s_add_u32 s38, s38, s39"); A(f"s_add_u32 s38, s38, {O_WS}")
    A("v_lshrrev_b32 v23, 4, v0"); A("v_lshl_add_u32 v23, v23, 4, s38"); A("v_lshl_add_u32 v252, v2, 11, v23")
    A("v_add_u32 v253, 0x8000, v252")
    names = [n for n, _ in seq]
    for n in names[:names.index("p1b")]:
        if pos[0] >= len(seq): break
        A.wait_vm(n); issue()
    A.wait_vm("p1b")
    issue(100)
    stamp("p1")
    check([P1, P1+4], "v22")
    A("s_cbranch_vccz L_haveq")
    A.wait_vm("p2b")
    A("L_qspin:")
    check([P2, P2+4], "v22")
    for k in range(8): A(f"v_mov_b32 v{P1+k}, v{P2+k}")
    A("s_cbranch_vccz L_haveq")
    for _, t in qpoll("p", P2): A(t)
    A("s_sub_u32 s40, s40, 1"); A("s_cbranch_scc1 L_end")
    A("s_waitcnt vmcnt(0)")
    A("s_branch L_qspin")
    A("L_haveq:")
    A(f"v_pk_add_f32 v[{P1}:{P1+1}], v[{P1}:{P1+1}], v[{P1+4}:{P1+5}]"); A(f"v_pk_add_f32 v[{P1+2}:{P1+3}], v[{P1+2}:{P1+3}], v[{P1+6}:{P1+7}]")
    A(f"v_permlane32_swap_b32 v{P1}, v{P1+2}"); A(f"v_permlane32_swap_b32 v{P1+1}, v{P1+3}")
    A(f"v_pk_add_f32 v[22:23], v[{P1}:{P1+1}], v[{P1+2}:{P1+3}]")
    A("v_cvt_pk_bf16_f32 v22, v22, v23")
    A(f"ds_write_b32 v245, v22 offset:{QB}")
    A("s_waitcnt lgkmcnt(0)")
    A("s_barrier")
    stamp("q")
    for kk in range(4): A(f"ds_read_b128 {vr(QBR+4*kk)}, v242 offset:{QB+64*kk}")
    A(f"v_mov_b32 v30, {fbits(128**-0.5):#x}"); A("v_mov_b32 v31, v30")
    for kk in range(4):
        A(f"s_waitcnt lgkmcnt({3-kk})")
        for t in range(2):
            A(f"v_mfma_f32_16x16x32_bf16 {vr(ST+4*t)}, {vr(KR+16*t+4*kk)}, {vr(QBR+4*kk)}, {'0' if kk == 0 else vr(ST+4*t)}")
    for i in range(8): A(f"v_cvt_pk_bf16_f32 v{ST+i}, 0, v{ST+i}")
    for i in range(0, 8, 2): A(f"v_pk_mul_f32 v[{ST+i}:{ST+i+1}], v[{ST+i}:{ST+i+1}], v[30:31]")
    for i in range(8): A(f"v_cvt_pk_bf16_f32 v{ST+i}, 0, v{ST+i}")
    A(f"v_max3_f32 v22, v{ST}, v{ST+1}, v{ST+2}"); A(f"v_max3_f32 v23, v{ST+3}, v{ST+4}, v{ST+5}")
    A(f"v_max3_f32 v22, v{ST+6}, v{ST+7}, v22"); A("v_max_f32 v22, v22, v23")
    A(f"ds_write_b32 v244, v22 offset:{MX}")
    A("s_waitcnt lgkmcnt(0)")
    A("s_barrier")
    for k in range(4): A(f"ds_read_b128 {vr(24+4*k)}, v243 offset:{MX+16*k}")
    A(f"s_mov_b32 s50, {LOG2E:#x}")
    A("s_waitcnt lgkmcnt(2)")
    A("v_max3_f32 v24, v24, v25, v26"); A("v_max3_f32 v27, v27, v28, v29"); A("v_max3_f32 v24, v24, v30, v31")
    A("s_waitcnt lgkmcnt(0)")
    A("v_max3_f32 v32, v32, v33, v34"); A("v_max3_f32 v35, v35, v36, v37"); A("v_max3_f32 v24, v24, v38, v39")
    A("v_max3_f32 v24, v24, v27, v32"); A("v_max_f32 v24, v24, v35")
    A("v_mul_f32 v28, s50, v24")
    for i in range(8): A(f"v_fma_f32 v{ST+i}, v{ST+i}, s50, -v28")
    A("s_cmp_lg_u32 s3, 0"); A("s_cbranch_scc1 L_mdone")
    A(f"v_or_b32 v24, {T[0]}, v24"); A(f"v_mov_b32 v25, {T[1]}"); A(f"v_mov_b32 v26, {T[2]}"); A(f"v_mov_b32 v27, {T[3]}")
    A("s_mov_b64 exec, 0x1111")
    A("global_store_dwordx4 v246, v[24:27], s[26:27] sc1")
    A("s_mov_b64 exec, -1")
    A("L_mdone:")
    for i in range(8): A(f"v_exp_f32 v{ST+i}, v{ST+i}")
    A(f"v_pk_add_f32 v[30:31], v[{ST}:{ST+1}], v[{ST+2}:{ST+3}]"); A(f"v_pk_add_f32 v[32:33], v[{ST+4}:{ST+5}], v[{ST+6}:{ST+7}]")
    for i in range(8): A(f"v_cvt_pk_bf16_f32 v{ST+i}, v{ST+i}, v{ST+i}")
    A("v_pk_add_f32 v[30:31], v[30:31], v[32:33]"); A("v_add_f32 v30, v30, v31")
    A(f"ds_write_b32 v247, v30 offset:{ORED+2048}")
    stamp("p")
    BC = "row_mask:0xf bank_mask:0xf bound_ctrl:0"
    def aops(i):
        a0 = AX + 8*(i % 2); a1 = a0 + 4; t = ST + i
        A(f"v_and_b32 v{a0}, v{t}, v4"); A(f"v_and_b32 v{a0+1}, v{t}, v5")
        A(f"v_and_b32_dpp v{a0+2}, v{t}, v6 row_shr:4 {BC}"); A(f"v_and_b32_dpp v{a0+3}, v{t}, v7 row_shr:4 {BC}")
        A(f"v_and_b32_dpp v{a1}, v{t}, v4 row_shl:4 {BC}"); A(f"v_and_b32_dpp v{a1+1}, v{t}, v5 row_shl:4 {BC}")
        A(f"v_and_b32 v{a1+2}, v{t}, v6"); A(f"v_and_b32 v{a1+3}, v{t}, v7")
    aops(0)
    for i in range(8):
        if i + 1 < 8: aops(i + 1)
        if i >= p1_after: A.wait_vm(f"v{i}")
        a0 = AX + 8*(i % 2)
        A(f"v_mfma_f32_16x16x32_bf16 {vr(ACO)}, {vr(a0)}, {vr(VR+4*i)}, {'0' if i == 0 else vr(ACO)}")
        A(f"v_mfma_f32_16x16x32_bf16 {vr(ACO+4)}, {vr(a0+4)}, {vr(VR+4*i)}, {'0' if i == 0 else vr(ACO+4)}")
    A(f"ds_write_b128 v248, {vr(ACO)} offset:{ORED}")
    A(f"ds_write_b128 v248, {vr(ACO+4)} offset:{ORED+1024}")
    A("s_waitcnt lgkmcnt(0)")
    A("s_barrier")
    stamp("pv")
    for k in range(4): A(f"ds_read_b128 {vr(24+4*k)}, v249 offset:{ORED + OSTR*k}")
    A("s_mov_b32 exec_hi, 1")
    A("s_waitcnt lgkmcnt(2)")
    A("v_pk_add_f32 v[24:25], v[24:25], v[28:29]"); A("v_pk_add_f32 v[26:27], v[26:27], v[30:31]")
    A("s_waitcnt lgkmcnt(0)")
    A("v_pk_add_f32 v[32:33], v[32:33], v[36:37]"); A("v_pk_add_f32 v[34:35], v[34:35], v[38:39]")
    A("v_pk_add_f32 v[24:25], v[24:25], v[32:33]"); A("v_pk_add_f32 v[26:27], v[26:27], v[34:35]")
    tagit(24)
    A.vmem("opub", "global_store_dwordx4 v250, v[24:27], s[26:27] sc1")
    A("s_mov_b32 exec_hi, -1")
    stamp("opub")
    MP, OP = 72, 80
    mpoll = [f"global_load_dwordx4 {vr(MP)}, v251, s[26:27] sc1", f"global_load_dwordx4 {vr(MP+4)}, v251, s[26:27] offset:256 sc1"]
    opoll = [f"global_load_dwordx4 {vr(OP)}, v252, s[26:27] sc1", f"global_load_dwordx4 {vr(OP+4)}, v253, s[26:27] sc1",
             f"global_load_dwordx4 {vr(OP+8)}, v254, s[26:27] sc1", f"global_load_dwordx4 {vr(OP+12)}, v254, s[26:27] offset:256 sc1"]
    A.vmem("mpa", mpoll[0]); A.vmem("mpb", mpoll[1])
    A.wait_vm("gg")
    A("L_gspin:")
    check([GG], "v22")
    A("s_cbranch_vccz L_haveg")
    A(f"global_load_dwordx4 {vr(GG)}, v239, s[26:27] sc1")
    A("s_sub_u32 s40, s40, 1"); A("s_cbranch_scc1 L_end")
    A("s_waitcnt vmcnt(0)")
    A("s_branch L_gspin")
    A("L_haveg:")
    A("v_and_b32 v28, 16, v0"); A("v_cmp_eq_u32 vcc, 0, v28")
    A(f"v_cndmask_b32 v28, v{GG+2}, v{GG}, vcc"); A(f"v_cndmask_b32 v29, v{GG+3}, v{GG+1}, vcc")
    for qp in ("[1,0,3,2]", "[2,3,0,1]"):
        A(f"v_add_f32_dpp v28, v28, v28 quad_perm:{qp} {DPPF}"); A(f"v_add_f32_dpp v29, v29, v29 quad_perm:{qp} {DPPF}")
    A("v_cvt_pk_bf16_f32 v28, 0, v28"); A("v_cvt_pk_bf16_f32 v29, 0, v29")
    A("v_mov_b32 v30, v28"); A("v_mov_b32 v31, v29"); A("v_mov_b32 v32, v28"); A("v_mov_b32 v33, v29")
    A("v_mov_b32_dpp v30, v28 row_ror:4 row_mask:0xf bank_mask:0xa"); A("v_mov_b32_dpp v31, v29 row_ror:4 row_mask:0xf bank_mask:0xa")
    A("v_mov_b32_dpp v32, v28 row_ror:4 row_mask:0xf bank_mask:0x5"); A("v_mov_b32_dpp v33, v29 row_ror:4 row_mask:0xf bank_mask:0x5")
    import math
    c1 = -2*math.sqrt(2/math.pi)*math.log2(math.e); c3 = c1*0.044715
    A(f"v_mov_b32 v36, {fbits(c1):#x}"); A(f"s_mov_b32 s38, {fbits(c3):#x}")
    for k in range(2):
        A(f"v_mul_f32 v{34+k}, v{30+k}, v{30+k}")
    for k in range(2):
        A(f"v_fma_f32 v{34+k}, v{34+k}, s38, v36")
    for k in range(2): A(f"v_mul_f32 v{34+k}, v{34+k}, v{30+k}")
    for k in range(2): A(f"v_exp_f32 v{34+k}, v{34+k}")
    for k in range(2): A(f"v_add_f32 v{34+k}, 1.0, v{34+k}")
    for k in range(2): A(f"v_rcp_f32 v{34+k}, v{34+k}")
    for k in range(2): A(f"v_mul_f32 v{34+k}, v{34+k}, v{30+k}")
    for k in range(2): A(f"v_cvt_pk_bf16_f32 v{34+k}, 0, v{34+k}")
    for k in range(2): A(f"v_mul_f32 v{34+k}, v{34+k}, v{32+k}")
    A("s_cmp_eq_u32 s46, 7"); A("s_cselect_b32 s38, 0, -1")
    for k in range(2): A(f"v_cvt_pk_bf16_f32 v{34+k}, v{34+k}, v{34+k}")
    for k in range(2): A(f"v_and_b32 v{34+k}, s38, v{34+k}")
    for k in range(2):
        for d in range(4): A(f"v_and_b32 v{AX+4*k+d}, v{34+k}, v{4+d}")
    ACF = ACQ
    A.wait_vm("dn1")
    for k in range(2):
        A(f"v_mfma_f32_16x16x32_bf16 {vr(ACF)}, {vr(AX+4*k)}, {vr(DN+4*k)}, {'0' if k == 0 else vr(ACF)}")
    stamp("ffn")
    for k, t in enumerate(opoll): A.vmem(f"op{k}", t)
    A.wait_vm("mpb")
    A("L_mspin:")
    check([MP, MP+4], "v22")
    A("s_cbranch_vccz L_havem")
    for t in mpoll: A(t)
    A("s_sub_u32 s40, s40, 1"); A("s_cbranch_scc1 L_end")
    A("s_waitcnt vmcnt(0)")
    A("s_branch L_mspin")
    A("L_havem:")
    A(f"v_and_b32 v28, 0xffff0000, v{MP}"); A(f"v_and_b32 v30, 0xffff0000, v{MP+4}")
    A("v_max_f32 v32, v28, v30")
    for r in (8, 4, 2, 1): A(f"v_max_f32_dpp v32, v32, v32 row_ror:{r} {DPPF}")
    A("v_sub_f32 v28, v28, v32"); A("v_sub_f32 v30, v30, v32")
    A("v_mul_f32 v28, s50, v28"); A("v_mul_f32 v30, s50, v30")
    A("v_exp_f32 v28, v28"); A("v_exp_f32 v30, v30")
    A("v_mov_b32 v29, v28"); A("v_mov_b32 v31, v30")
    A("v_and_b32 v240, 0xfffffff0, v240")
    A("s_lshl_b32 s38, s47, 6"); A("s_lshl_b32 s39, s28, 3"); A("s_add_u32 s38, s38, s39"); A("s_add_u32 s38, s38, s46"); A("s_lshl_b32 s38, s38, 9")
    A(f"s_add_u32 s38, s38, {F_WS}"); A("v_add_u32 v246, s38, v236")
    stamp("m")
    A("s_waitcnt vmcnt(0)")
    A("L_ospin:")
    check([OP, OP+4, OP+8, OP+12], "v22")
    A("s_cbranch_vccz L_haveo")
    for t in opoll: A(t)
    A("s_sub_u32 s40, s40, 1"); A("s_cbranch_scc1 L_end")
    A("s_waitcnt vmcnt(0)")
    A("s_branch L_ospin")
    A("L_haveo:")
    stamp("o")
    A(f"v_pk_mul_f32 v[32:33], v[{OP}:{OP+1}], v[28:29]"); A(f"v_pk_mul_f32 v[34:35], v[{OP+2}:{OP+3}], v[28:29]")
    A(f"v_pk_add_f32 v[36:37], v[{OP+8}:{OP+9}], v[{OP+10}:{OP+11}]"); A(f"v_pk_add_f32 v[38:39], v[{OP+12}:{OP+13}], v[{OP+14}:{OP+15}]")
    A(f"v_pk_fma_f32 v[32:33], v[{OP+4}:{OP+5}], v[30:31], v[32:33]"); A(f"v_pk_fma_f32 v[34:35], v[{OP+6}:{OP+7}], v[30:31], v[34:35]")
    A("v_pk_mul_f32 v[36:37], v[36:37], v[28:29]"); A("v_pk_fma_f32 v[36:37], v[38:39], v[30:31], v[36:37]"); A("v_add_f32 v36, v36, v37")
    for r in (8, 4, 2, 1):
        for x in (36, 32, 33, 34, 35): A(f"v_add_f32_dpp v{x}, v{x}, v{x} row_ror:{r} {DPPF}")
    A("v_rcp_f32 v36, v36")
    for x in range(4): A(f"v_mul_f32 v{32+x}, v{32+x}, v36")
    for x in range(4): A(f"v_cvt_pk_bf16_f32 v{32+x}, v{32+x}, v{32+x}")
    for x in range(4):
        for d in range(4): A(f"v_and_b32 v{AX+4*x+d}, v{32+x}, v{4+d}")
        if x >= 1: A(f"v_mfma_f32_16x16x32_bf16 {vr(ACF)}, {vr(AX+4*(x-1))}, {vr(WO+4*(x-1))}, {vr(ACF)}")
    A(f"v_mfma_f32_16x16x32_bf16 {vr(ACF)}, {vr(AX+12)}, {vr(WO+12)}, {vr(ACF)}")
    A(f"ds_write_b128 v240, {vr(ACF)} offset:{FRED}")
    A("s_waitcnt lgkmcnt(0)")
    A("s_barrier")
    A("s_cmp_lg_u32 s3, 0"); A("s_cbranch_scc1 L_notpub")
    for k in range(4): A(f"ds_read_b128 {vr(24+4*k)}, v236 offset:{FRED + 512*k}")
    A("s_mov_b32 exec_hi, 0")
    A("s_waitcnt lgkmcnt(2)")
    A("v_pk_add_f32 v[24:25], v[24:25], v[28:29]"); A("v_pk_add_f32 v[26:27], v[26:27], v[30:31]")
    A("s_waitcnt lgkmcnt(0)")
    A("v_pk_add_f32 v[32:33], v[32:33], v[36:37]"); A("v_pk_add_f32 v[34:35], v[34:35], v[38:39]")
    A("v_pk_add_f32 v[24:25], v[24:25], v[32:33]"); A("v_pk_add_f32 v[26:27], v[26:27], v[34:35]")
    tagit(24)
    A("global_store_dwordx4 v246, v[24:27], s[26:27] sc1")
    A("s_mov_b32 exec_hi, -1")
    stamp("fpub")
    A("s_branch L_fin")
    A("L_notpub:")
    A("s_cmp_lg_u32 s3, 1"); A("s_cbranch_scc1 L_fin")
    A("s_cmp_ge_u32 s2, 128"); A("s_cbranch_scc1 L_fin")
    A("s_lshl_b32 s38, s36, 3"); A("s_add_u32 s38, s38, s28")
    A("s_lshr_b32 s39, s38, 2"); A("s_lshl_b32 s39, s39, 15"); A("s_and_b32 s51, s38, 3"); A("s_lshl_b32 s51, s51, 7"); A("s_add_u32 s39, s39, s51")
    A("s_lshl_b32 s51, s37, 4"); A("s_add_u32 s39, s39, s51"); A(f"s_add_u32 s39, s39, {F_WS}")
    A("v_lshl_add_u32 v246, v1, 9, s39")
    A("s_lshl_b32 s38, s38, 6"); A("s_lshl_b32 s51, s37, 3"); A("s_add_u32 s38, s38, s51")
    A("v_mov_b32 v245, s38")
    A("global_load_dwordx2 v[20:21], v245, s[4:5]")
    A("L_fspin:")
    A("global_load_dwordx4 v[24:27], v246, s[26:27] sc1")
    A("s_sub_u32 s40, s40, 1"); A("s_cbranch_scc1 L_end")
    A("s_waitcnt vmcnt(0)")
    check([24], "v22")
    A("s_cbranch_vccnz L_fspin")
    for r in (8, 4, 2, 1):
        for x in range(4): A(f"v_add_f32_dpp v{24+x}, v{24+x}, v{24+x} row_ror:{r} {DPPF}")
    for x in range(4): A(f"v_add_f32_dpp v{24+x}, v{24+x}, v{24+x} row_bcast:15 row_mask:0xa bank_mask:0xf")
    for i in range(2):
        A(f"v_lshlrev_b32 v{28+2*i}, 16, v{20+i}"); A(f"v_and_b32 v{29+2*i}, 0xffff0000, v{20+i}")
    for x in range(4): A(f"v_add_f32_dpp v{24+x}, v{24+x}, v{24+x} row_bcast:31 row_mask:0xc bank_mask:0xf")
    A("v_pk_add_f32 v[24:25], v[24:25], v[28:29]"); A("v_pk_add_f32 v[26:27], v[26:27], v[30:31]")
    A("v_cvt_pk_bf16_f32 v24, v24, v25"); A("v_cvt_pk_bf16_f32 v25, v26, v27")
    A("s_mov_b32 exec_lo, 0"); A("s_mov_b32 exec_hi, 0x80000000")
    A("global_store_dwordx2 v245, v[24:25], s[22:23]")
    A("s_cmp_lg_u32 s2, 0"); A("s_cbranch_scc1 L_fin2")
    A("v_mov_b32 v26, s30"); A("v_mov_b32 v27, 0")
    A("global_store_dword v27, v26, s[26:27]")
    A("L_fin2:")
    A("s_mov_b64 exec, -1")
    if stamps:
        nst[0] -= 1
        stamp("final")
    A("L_fin:")
    if stamps:
        A("s_getreg_b32 s90, hwreg(HW_REG_XCC_ID)")
        A("s_waitcnt lgkmcnt(0)")
        for i in range(16): A(f"v_writelane_b32 v8, s{60+2*i}, {i}")
        A("s_lshl_b32 s38, s2, 3"); A("s_add_u32 s38, s38, s3"); A("s_lshl_b32 s38, s38, 6"); A(f"s_add_u32 s38, s38, {STAMP}")
        A("v_lshl_add_u32 v9, v1, 2, s38")
        A("s_mov_b64 exec, 0xffff")
        A("global_store_dword v9, v8, s[26:27]")
    A("L_end:")
    body = A.text()
    return HEADER + f"""; @launch grid=(256,1,1) block=(256,1,1) lds={LDS_BYTES}
.amdgcn_target "amdgcn-amd-amdhsa--gfx950"
.text
.globl {KN}
.p2align 8
.type {KN},@function
{KN}:
{body}
  s_endpgm
.section .rodata,"a"
.p2align 6
.amdhsa_kernel {KN}
  .amdhsa_next_free_vgpr 256
  .amdhsa_next_free_sgpr {94 if stamps else 56}
  .amdhsa_accum_offset 256
  .amdhsa_group_segment_fixed_size 0
  .amdhsa_kernarg_size 96
  .amdhsa_user_sgpr_count 2
  .amdhsa_user_sgpr_kernarg_segment_ptr 1
  .amdhsa_system_sgpr_workgroup_id_x 1
.end_amdhsa_kernel
"""
if __name__ == "__main__":
    open("parallel_sum__sliding_block_cached__geglu_ffn__decode.s", "w").write(gen())
    open("k1_st.s", "w").write(gen(stamps=True))
    open("k1_plain.s", "w").write(gen(pol=""))
```
